```python
import torch

def _softmax(x, axis=-1):
    return torch.softmax(x, dim=axis)

def _gelu(x):
    return torch.nn.functional.gelu(x, approximate='tanh')

def _silu(x):
    return torch.nn.functional.silu(x)

def _sigmoid(x):
    return torch.sigmoid(x)

def _layernorm(x, axis=-1, eps=1e-05):
    m = x.mean(dim=axis, keepdim=True)
    v = x.var(dim=axis, keepdim=True, unbiased=False)
    return (x - m) / torch.sqrt(v + eps)

def _scatter_add(tgt, idx, src, axis=0):
    return tgt.clone().index_add_(axis, idx, src)

def _segment_sum(src, seg, n):
    out = torch.zeros((n,) + src.shape[1:], dtype=src.dtype)
    return out.index_add_(0, seg, src)

def _pad(x, pw):
    flat = tuple((v for pair in reversed(pw) for v in pair))
    return torch.nn.functional.pad(x, flat)
kernel_name = 'standalone__video_video_swin__vision'

def setup_inputs():

    _w = lambda a: (lambda t: t.to(torch.bfloat16) if t.is_floating_point() else t)(torch.as_tensor(a))
    T = 4
    H = W = 224 // 7 * 7
    C, win = (96, 7)
    return {'x': _w((lambda *s: torch.randn(*s, dtype=torch.bfloat16) * 0.1)(1, T, H, W, C)), 'wqkv_t': _w((lambda *s: torch.randn(*s, dtype=torch.bfloat16) * 0.1)(C, 3 * C)), 'wo_t': _w((lambda *s: torch.randn(*s, dtype=torch.bfloat16) * 0.1)(C, C)), 'wqkv_s': _w((lambda *s: torch.randn(*s, dtype=torch.bfloat16) * 0.1)(C, 3 * C)), 'wo_s': _w((lambda *s: torch.randn(*s, dtype=torch.bfloat16) * 0.05)(C, C))}

def reference(x, wqkv_t, wo_t, wqkv_s, wo_s):
    B, T, H, W, C = x.shape
    win = 7
    scale = C ** (-0.5)
    h = _layernorm(x, axis=-1)
    ht = (lambda x, *d: x.permute(*d))(h, 0, 2, 3, 1, 4).reshape(B * H * W, T, C)
    qkv = ht @ wqkv_t
    q, k, v = (qkv[..., :C].clone(), qkv[..., C:2 * C].clone(), qkv[..., 2 * C:].clone())
    p = _softmax(torch.einsum('btc,bsc->bts', q, k) * scale, axis=-1)
    ot = torch.einsum('bts,bsc->btc', p, v) @ wo_t
    ot = (lambda x, *d: x.permute(*d))(ot.reshape(B, H, W, T, C), 0, 3, 1, 2, 4)
    x = x + ot
    h = _layernorm(x, axis=-1)
    nh, nw = (H // win, W // win)
    hs = h.reshape(B * T, nh, win, nw, win, C)
    hw = (lambda x, *d: x.permute(*d))(hs, 0, 1, 3, 2, 4, 5).reshape(B * T * nh * nw, win * win, C)
    qkv = hw @ wqkv_s
    q, k, v = (qkv[..., :C].clone(), qkv[..., C:2 * C].clone(), qkv[..., 2 * C:].clone())
    p = _softmax(torch.einsum('bqc,bkc->bqk', q, k) * scale, axis=-1)
    os = torch.einsum('bqk,bkc->bqc', p, v) @ wo_s
    os = (lambda x, *d: x.permute(*d))(os.reshape(B * T, nh, nw, win, win, C), 0, 1, 3, 2, 4, 5)
    os = os.reshape(B, T, H, W, C)
    return x + os
```

```python
import re

def vr(a, n=1):
    return f"v{a}" if n == 1 else f"v[{a}:{a+n-1}]"

def sr(a, n=1):
    return f"s{a}" if n == 1 else f"s[{a}:{a+n-1}]"

_REG = re.compile(r"^(-?)\|?([vs])(\d+)\|?$")
_RNG = re.compile(r"^(-?)([vs])\[(\d+):(\d+)\]$")

def regs_of(op):
    op = op.strip()
    m = _REG.match(op)
    if m:
        return [(m.group(2), int(m.group(3)))]
    m = _RNG.match(op)
    if m:
        return [(m.group(2), i) for i in range(int(m.group(3)), int(m.group(4)) + 1)]
    if op == "vcc":
        return [("s", 106), ("s", 107)]
    if op == "m0":
        return [("m", 0)]
    if op == "exec":
        return [("e", 0)]
    return []

TRANS = ("v_exp_f32", "v_rcp_f32", "v_rsq_f32", "v_log_f32", "v_sqrt_f32")

class I:
    __slots__ = ("op", "args", "mods", "rd", "wr", "kind", "srcC", "dpp", "mem", "txt",
                 "idx", "preds", "succs", "prio", "passes", "comment", "fence", "extra_lat")
    def __init__(self, op, args, mods="", rd=None, wr=None, mem=None, comment=""):
        self.op = op
        self.args = list(args)
        self.mods = mods
        self.mem = mem
        self.comment = comment
        self.fence = False
        self.srcC = set()
        self.passes = 0
        self.dpp = ("quad_perm" in mods) or ("row_" in mods and "row_mask" in mods) or op.endswith("_dpp")
        self.extra_lat = 0
        k, r, w = self.classify()
        self.kind = k
        self.rd = set(r) | set(rd or [])
        self.wr = set(w) | set(wr or [])

    def classify(self):
        op, a = self.op, self.args
        R = lambda xs: [x for o in xs for x in regs_of(o)]
        if op.startswith("v_mfma"):
            self.passes = 8 if "32x32" in op else 4
            self.srcC = set(regs_of(a[3]))
            return ("mfma", R(a[1:]), regs_of(a[0]))
        if op.startswith("v_permlane"):
            return ("perm", R(a), R(a))
        if op.startswith("v_cmp"):
            return ("valu", R(a[1:]) + [("e", 0)], regs_of(a[0]))
        if op.startswith("v_readfirstlane") or op.startswith("v_readlane"):
            return ("rfl", R(a[1:]), regs_of(a[0]))
        if op.startswith("v_"):
            base = op.replace("_e32", "").replace("_e64", "").replace("_dpp", "")
            rd = R(a[1:]) + [("e", 0)]
            if base in ("v_fmac_f32", "v_mac_f32") or "d16" in base:
                rd += regs_of(a[0])
            kind = "trans" if base in TRANS else "valu"
            return (kind, rd, regs_of(a[0]))
        if op.startswith("ds_read"):
            return ("dsr", R(a[1:]) + [("e", 0)], regs_of(a[0]))
        if op.startswith("ds_write"):
            return ("dsw", R(a) + [("e", 0)], [])
        if op.startswith("buffer_load"):
            if " lds" in (" " + self.mods):
                return ("dma", R(a) + [("m", 0), ("e", 0)], [])
            rd = R(a[1:]) + [("e", 0)]
            if "d16" in op:
                rd += regs_of(a[0])
            return ("vld", rd, regs_of(a[0]))
        if op.startswith("buffer_store"):
            return ("vst", R(a) + [("e", 0)], [])
        if op in ("s_waitcnt", "s_nop", "s_barrier", "s_setprio", "s_endpgm", "s_branch") or op.startswith("s_cbranch"):
            return ("ctl", [], [])
        if op.startswith("s_cmp"):
            return ("salu", R(a), [("c", 0)])
        if op.startswith("s_load") or op.startswith("s_memtime") or op.startswith("s_memrealtime"):
            return ("smem", R(a[1:]), regs_of(a[0]))
        if op.startswith("s_"):
            rd = R(a[1:])
            wr = regs_of(a[0])
            if op.startswith("s_cselect") or op.startswith("s_addc") or op.startswith("s_subb"):
                rd += [("c", 0)]
            if not (op.startswith("s_mov") or op.startswith("s_cselect") or op.startswith("s_mul")):
                wr += [("c", 0)]
            if "saveexec" in op:
                rd += [("e", 0)]
                wr += [("e", 0)]
            return ("salu", rd, wr)
        if op == "label" or op == "raw":
            return ("ctl", [], [])
        raise ValueError("unknown op " + op)

    def text(self):
        if self.op == "label":
            return f"{self.args[0]}:"
        if self.op == "raw":
            return self.args[0]
        s = "  " + self.op
        if self.args:
            s += " " + ", ".join(self.args)
        if self.mods:
            s += " " + self.mods
        if self.comment:
            s += "  ; " + self.comment
        return s


class Prog:
    def __init__(self):
        self.ins = []
    def e(self, op, *args, mods="", rd=None, wr=None, mem=None, comment=""):
        args = [a if isinstance(a, str) else (hex(a) if (a > 64 or a < -16) else str(a)) for a in args]
        i = I(op, args, mods, rd, wr, mem, comment)
        self.ins.append(i)
        return i
    def label(self, name):
        i = I("label", [name]); i.fence = True
        self.ins.append(i); return i
    def raw(self, txt):
        i = I("raw", [txt]); i.fence = True
        self.ins.append(i); return i
    def fence(self, op, *args, mods=""):
        i = self.e(op, *args, mods=mods); i.fence = True
        return i
    def extend(self, other):
        self.ins.extend(other.ins if isinstance(other, Prog) else other)


def issue_cost(i):
    k = i.kind
    if k == "mfma": return 8
    if k in ("trans", "perm"): return 8
    if k in ("valu", "rfl"): return 4
    if k == "dsr": return 4
    if k == "dsw": return 8 if "b128" in i.op else 4
    if k in ("vst", "vld"): return 8
    if k == "dma": return 16
    return 2

def pipe_cost(i):
    if i.kind != "mfma": return 0
    return 4 * i.passes

def latency(p, c, r, kindedge):
    if kindedge == "raw":
        if p.kind == "mfma":
            if c.kind == "mfma" and r in c.srcC and c.srcC == p.wr and c.passes == p.passes:
                return 4 * p.passes
            return 4 * p.passes + 36
        if p.kind == "dsr": return 120
        if p.kind == "vld": return 600
        if p.kind == "trans": return 14
        if p.kind in ("valu", "perm"):
            if c.kind == "mfma" or c.dpp or c.kind == "perm": return 12
            return 7
        if p.kind == "rfl": return 16
        if p.kind == "salu": return 4
        return 4
    if kindedge == "war":
        if p.kind == "mfma" and r in p.srcC and c.kind != "mfma": return 4 * p.passes + 4
        if p.kind in ("vst", "dsw"): return 12
        return 1
    if kindedge == "waw":
        if p.kind == "mfma": return 4 * p.passes + 36 if c.kind != "mfma" else 4 * p.passes
        if p.kind == "dsr": return 120
        return 4
    return 1


def build_deps(ins):
    n = len(ins)
    lastw = {}
    readers = {}
    memw = {}
    memr = {}
    for j, c in enumerate(ins):
        c.idx = j
        c.preds = {}
        c.succs = {}
    def add(p, c, lat):
        if p is c: return
        if c.preds.get(p.idx, -1) < lat:
            c.preds[p.idx] = lat
            p.succs[c.idx] = lat
    for c in ins:
        for r in c.rd:
            if r in lastw:
                add(lastw[r], c, latency(lastw[r], c, r, "raw"))
        for r in c.wr:
            if r in lastw:
                add(lastw[r], c, latency(lastw[r], c, r, "waw"))
            for p in readers.get(r, []):
                add(p, c, latency(p, c, r, "war"))
        if c.mem:
            regs = c.mem[0] if isinstance(c.mem[0], (list, tuple)) else [c.mem[0]]
            for reg in regs:
                if c.mem[1] == "r":
                    for p in memw.get(reg, []): add(p, c, 4)
                    memr.setdefault(reg, []).append(c)
                else:
                    for p in memw.get(reg, []): add(p, c, 4)
                    for p in memr.get(reg, []): add(p, c, 4)
                    memw[reg] = [c]
                    memr[reg] = []
        for r in c.rd:
            readers.setdefault(r, []).append(c)
        for r in c.wr:
            lastw[r] = c
            readers[r] = []


def schedule(ins, pipe_share=1.0, issue_share=1.0, verbose=False):
    if not ins: return []
    build_deps(ins)
    n = len(ins)
    for c in reversed(ins):
        c.prio = max([lat + ins[s].prio for s, lat in c.succs.items()] + [issue_cost(c)]) + c.extra_lat
    npred = [len(c.preds) for c in ins]
    ready_t = [0] * n
    ready = [c.idx for c in ins if not c.preds]
    t = 0.0
    pipe_free = 0.0
    out = []
    while ready:
        best = None
        bk = None
        for j in ready:
            c = ins[j]
            st = max(t, ready_t[j])
            if c.kind == "mfma": st = max(st, pipe_free - 8)
            key = (max(st - t, 0) > 0, st if st > t else 0, -c.prio, j)
            if bk is None or key < bk:
                bk, best = key, j
        c = ins[best]
        st = max(t, ready_t[best])
        if c.kind == "mfma":
            st = max(st, pipe_free - 8)
            pipe_free = max(pipe_free, st) + pipe_cost(c) / pipe_share
        t = st + issue_cost(c) / issue_share
        out.append(c)
        ready.remove(best)
        for s, lat in c.succs.items():
            ready_t[s] = max(ready_t[s], st + lat)
            npred[s] -= 1
            if npred[s] == 0: ready.append(s)
    assert len(out) == n
    if verbose:
        nm = sum(1 for c in ins if c.kind == "mfma")
        print(f"  sched: {n} instrs, {nm} mfma, est {t:.0f} cyc")
    return out


def schedule_prog(ins, **kw):
    out, seg = [], []
    for c in ins:
        if c.fence or c.kind == "ctl":
            out += schedule(seg, **kw); seg = []
            out.append(c)
        else:
            seg.append(c)
    out += schedule(seg, **kw)
    return out


def is_valu(i):
    return i.kind in ("valu", "trans", "perm", "rfl")

def need_states(p, c):
    need = 0
    raw = p.wr & c.rd
    waw = p.wr & c.wr
    vraw = {r for r in raw if r[0] == "v"}
    sraw = {r for r in raw if r[0] == "s"}
    if p.kind == "mfma":
        big = 12 if p.passes == 8 else 8
        if c.kind == "mfma":
            ab = vraw - c.srcC if not (vraw & set().union(*[set()])) else vraw
            a_regs = set(regs_of(c.args[1])) | set(regs_of(c.args[2]))
            if p.wr & a_regs: need = max(need, big)
            if p.wr & c.srcC:
                if not (c.srcC == p.wr and c.passes == p.passes):
                    need = max(need, 10 if p.passes == 8 else 6)
            elif waw:
                need = max(need, 10 if p.passes == 8 else 6)
        else:
            if vraw or {r for r in waw if r[0] == "v"}: need = max(need, big)
        if is_valu(c) and (p.srcC & c.wr):
            need = max(need, 7 if p.passes == 8 else 3)
        return need
    if is_valu(p):
        if c.kind == "mfma" and vraw: need = max(need, 2)
        if c.dpp and vraw: need = max(need, 2)
        if c.kind == "perm" and vraw: need = max(need, 2)
        if c.kind == "rfl" and vraw: need = max(need, 1)
        if p.kind == "trans" and vraw and is_valu(c) and c.kind != "trans": need = max(need, 1)
        if p.kind == "trans" and vraw and c.kind in ("dsw", "vst", "dsr", "dma", "vld"): need = max(need, 1)
        if sraw:
            if is_valu(c): need = max(need, 2)
            if c.kind in ("vst", "vld", "dma"): need = max(need, 5)
            if c.kind == "salu": need = max(need, 4)
        if ("e", 0) in p.wr: need = max(need, 5)
        return need
    if p.kind in ("vst", "dsw") and ("x4" in p.op or "x3" in p.op or "b128" in p.op):
        data = set(regs_of(p.args[0])) if p.kind == "vst" else set(regs_of(p.args[1]))
        if data & c.wr: need = max(need, 2)
        return need
    if p.kind == "salu":
        if ("m", 0) in p.wr and c.kind == "dma": need = max(need, 1)
        if ("e", 0) in p.wr and (c.dpp or c.kind in ("perm", "mfma", "rfl")): need = max(need, 1)
    return need

def states(i):
    if i.op == "s_nop": return int(i.args[0]) + 1
    if i.op in ("label", "raw"): return 0
    return 1

def fix_hazards(ins, prefix=()):
    WIN = 14
    out = []
    hist = list(prefix)[-40:]
    for c in ins:
        if c.op not in ("label", "raw") and c.kind != "ctl" or c.op in ("s_barrier",):
            need = 0
            dist = 0
            for p in reversed(hist):
                if dist >= WIN: break
                ns = need_states(p, c)
                if ns > dist: need = max(need, ns - dist)
                dist += states(p)
            if need > 0:
                nop = I("s_nop", [str(need - 1)])
                out.append(nop); hist.append(nop)
        out.append(c); hist.append(c)
        if len(hist) > 64: hist = hist[-40:]
    return out


def fix_waits(ins, lg_init=0, vm_init=0):
    out = []
    lg = [None] * lg_init
    vm = [None] * vm_init
    for c in ins:
        if c.op == "s_waitcnt":
            m = re.search(r"lgkmcnt\((\d+)\)", " ".join(c.args) + " " + c.mods)
            if m:
                k = int(m.group(1)); lg = lg[len(lg) - k:] if k < len(lg) else lg
                if k == 0: lg = []
            m = re.search(r"vmcnt\((\d+)\)", " ".join(c.args) + " " + c.mods)
            if m:
                k = int(m.group(1)); vm = vm[len(vm) - k:] if k < len(vm) else vm
                if k == 0: vm = []
            out.append(c); continue
        touch = c.rd | c.wr
        needl = needv = None
        for pos, s in enumerate(lg):
            if s and (s & touch):
                if c.kind == "dsr" and not (s & c.rd): continue
                needl = len(lg) - pos - 1
        for pos, s in enumerate(vm):
            if s and (s & touch):
                needv = len(vm) - pos - 1
        parts = []
        if needv is not None:
            needv = min(needv, 63); parts.append(f"vmcnt({needv})"); vm = vm[len(vm) - needv:] if needv else []
        if needl is not None:
            needl = min(needl, 15); parts.append(f"lgkmcnt({needl})"); lg = lg[len(lg) - needl:] if needl else []
        if parts:
            out.append(I("s_waitcnt", [" ".join(parts)]))
        out.append(c)
        if c.kind == "dsr": lg.append(set(c.wr))
        elif c.kind == "dsw": lg.append(None)
        elif c.kind == "smem":
            lg.append(set(c.wr));
        elif c.kind == "vld": vm.append(set(c.wr))
        elif c.kind in ("vst", "dma"): vm.append(None)
    return out


def finalize(ins, sched=True, loop=False, verbose=False, **kw):
    if sched: ins = schedule_prog(ins, verbose=verbose, **kw)
    ins = fix_waits(ins)
    o = fix_hazards(ins)
    if loop:
        o = fix_hazards(ins, prefix=o[-40:])
    return o

def text(ins):
    return "\n".join(i.text() for i in ins) + "\n"
```

```python
import sys, math, struct
from dsl import *

def f2u(x):
    return struct.unpack("<I", struct.pack("<f", x))[0]

OPT = dict(mode="full", stamps=False, xnt=False, snt=False, sched=True, prioS=0, prioT=0)

FS = 9633792
RS = 43008
NBYTES = 38535168
L_WAT, L_WBT, L_WAS, L_WBS = 0, 18432, 36864, 55296
L_BUF0, L_BUF1 = 73728, 110592
BUFSZ = 36864
FRSZ = 9216
L_EXT = 147456
L_RBUF = 150528
L_TAB = 154624
LDS_TOTAL = 163840
EPS96 = f2u(96 * 1e-5)
C_SCALE = f2u(math.sqrt(96.0) * 1.4426950408889634)
NEG_INV96 = f2u(-1.0 / 96.0)

def mfma16(P, d, a, b, c):
    return P.e("v_mfma_f32_16x16x32_bf16", vr(d, 4), vr(a, 4), vr(b, 4), "0" if c is None else vr(c, 4))
def mfma16k16(P, d, a, b, c):
    return P.e("v_mfma_f32_16x16x16_bf16", vr(d, 4), vr(a, 2), vr(b, 2), "0" if c is None else vr(c, 4))
def mfma32(P, d, a, b, c):
    return P.e("v_mfma_f32_32x32x16_bf16", vr(d, 16), vr(a, 4), vr(b, 4), "0" if c is None else vr(c, 16))
def cvtpk(P, d, a, b):
    return P.e("v_cvt_pk_bf16_f32", vr(d), a if isinstance(a, str) else vr(a), b if isinstance(b, str) else vr(b))
def srd(P, s, lo, nbytes):
    P.e("s_mov_b32", sr(s), sr(lo)); P.e("s_mov_b32", sr(s + 1), sr(lo + 1))
    P.e("s_mov_b32", sr(s + 2), nbytes); P.e("s_mov_b32", sr(s + 3), 0x00020000)

def gen_prep():
    out = []
    P = Prog()
    P.label("prep_kernel")
    P.e("s_cmp_ge_u32", "s2", 4)
    P.fence("s_cbranch_scc1", "PREP_END")
    P.e("s_load_dwordx4", "s[4:7]", "s[0:1]", 8)
    P.e("s_load_dwordx4", "s[24:27]", "s[0:1]", 24)
    P.e("s_load_dwordx2", "s[28:29]", "s[0:1]", 56)
    P.e("v_lshrrev_b32", "v1", 6, "v0")
    P.e("v_and_b32", "v2", 63, "v0")
    P.e("s_nop", 0)
    P.e("v_readfirstlane_b32", "s20", "v1")
    P.fence("s_waitcnt", "lgkmcnt(0)")
    P.e("s_lshr_b32", "s21", "s2", 1)
    P.e("s_cmp_eq_u32", "s21", 0)
    P.e("s_cselect_b32", "s4", "s4", "s24"); P.e("s_cselect_b32", "s5", "s5", "s25")
    P.e("s_cselect_b32", "s6", "s6", "s26"); P.e("s_cselect_b32", "s7", "s7", "s27")
    srd(P, 8, 4, 96 * 288 * 2)
    srd(P, 12, 6, 96 * 96 * 2)
    srd(P, 16, 28, 73728)
    P.e("v_and_b32", "v3", 15, "v2")
    P.e("v_lshrrev_b32", "v4", 4, "v2")
    P.e("v_lshrrev_b32", "v5", 2, "v3")
    P.e("v_and_b32", "v6", 3, "v3")
    P.e("v_lshl_add_u32", "v7", "v5", 3, "v6")
    P.e("s_lshr_b32", "s22", "s20", 1); P.e("s_lshl_b32", "s22", "s22", 5)
    P.e("s_and_b32", "s23", "s20", 1)
    P.e("s_lshl_b32", "s30", "s23", 2)
    P.e("s_lshl_b32", "s31", "s23", 4)
    P.e("v_add_u32", "v8", "s30", "v7")
    P.e("v_and_b32", "v9", 1, "v5")
    P.e("v_lshlrev_b32", "v9", 3, "v9")
    P.e("v_lshrrev_b32", "v10", 3, "v3")
    P.e("v_lshl_add_u32", "v9", "v10", 2, "v9")
    P.e("v_add_u32", "v9", "v9", "v6")
    P.e("v_add_u32", "v9", "s31", "v9")
    P.e("s_cmp_eq_u32", "s21", 0)
    P.e("s_cselect_b64", "s[32:33]", -1, 0)
    P.e("v_cndmask_b32_e64", "v8", "v9", "v8", "s[32:33]")
    P.e("v_add_u32", "v11", "s22", "v8")
    P.e("s_mul_i32", "s35", "s20", 3072)
    P.e("v_lshlrev_b32", "v12", 4, "v2")
    P.e("v_add_u32", "v12", "s35", "v12")
    P.e("s_lshr_b32", "s36", "s20", 1); P.e("s_mul_i32", "s36", "s36", 6144)
    P.e("s_lshl_b32", "s37", "s23", 8)
    P.e("s_add_u32", "s36", "s36", "s37")
    P.e("v_lshrrev_b32", "v13", 1, "v4")
    P.e("v_lshlrev_b32", "v13", 10, "v13")
    P.e("v_and_b32", "v14", 1, "v4")
    P.e("v_lshl_add_u32", "v13", "v14", 9, "v13")
    P.e("v_lshl_add_u32", "v13", "v3", 4, "v13")
    P.e("v_add_u32", "v13", "s36", "v13")
    P.e("v_cndmask_b32_e64", "v12", "v13", "v12", "s[32:33]")
    P.e("s_lshl_b32", "s34", 1024, "s21")
    P.e("s_mul_i32", "s38", "s21", 36864)
    P.e("s_and_b32", "s39", "s2", 1)
    P.e("s_mul_i32", "s40", "s39", 18432)
    P.e("s_add_u32", "s38", "s38", "s40")
    P.e("s_cmp_eq_u32", "s39", 0)
    P.fence("s_cbranch_scc0", "PREP_B")
    out += finalize(P.ins, sched=False)

    P = Prog()
    WQ, WK = 64, 136
    BK, BQ = 208, 220
    M, MT = 16, 40
    P.e("v_mul_u32_u24", "v15", 576, "v7")
    P.e("v_lshl_add_u32", "v15", "v4", 4, "v15")
    for v in range(6):
        ro = (32 * (v >> 1) + 4 * (v & 1)) * 576
        P.e("s_mov_b32", "s41", ro)
        for k in range(3):
            P.e("buffer_load_dwordx4", vr(WQ + (v * 3 + k) * 4, 4), "v15", "s[8:11]", "s41", mods=f"offen offset:{64*k}")
            P.e("buffer_load_dwordx4", vr(WK + (v * 3 + k) * 4, 4), "v15", "s[8:11]", "s41", mods=f"offen offset:{192+64*k}")
    P.e("v_mul_u32_u24", "v232", 576, "v11")
    P.e("v_lshl_add_u32", "v232", "v4", 4, "v232")
    for k in range(3):
        P.e("buffer_load_dwordx4", vr(BK + 4 * k, 4), "v232", "s[8:11]", "0", mods=f"offen offset:{192+64*k}")
    P.e("s_lshl_b32", "s42", "s20", 4)
    P.e("v_add_u32", "v233", "s42", "v3")
    P.e("v_mul_u32_u24", "v234", 576, "v233")
    P.e("v_lshl_add_u32", "v234", "v4", 4, "v234")
    for k in range(3):
        P.e("buffer_load_dwordx4", vr(BQ + 4 * k, 4), "v234", "s[8:11]", "0", mods=f"offen offset:{64*k}")
    for v in range(6):
        for k in range(3):
            mfma16(P, M + 4 * v, WQ + (v * 3 + k) * 4, BK + 4 * k, None if k == 0 else M + 4 * v)
    for v in range(6):
        for k in range(3):
            mfma16(P, MT + 4 * v, WK + (v * 3 + k) * 4, BQ + 4 * k, None if k == 0 else MT + 4 * v)
    def redsum(base, dst, t):
        P.e("v_add_f32", vr(dst), vr(base), vr(base + 1))
        for j in range(2, 24):
            P.e("v_add_f32", vr(dst), vr(dst), vr(base + j))
        xq(dst, t)
    def xq(dst, t):
        P.e("v_mov_b32", vr(t), vr(dst))
        P.e("v_permlane16_swap_b32", vr(dst), vr(t))
        P.e("v_add_f32", vr(dst), vr(dst), vr(t))
        P.e("v_mov_b32", vr(t), vr(dst))
        P.e("v_permlane32_swap_b32", vr(dst), vr(t))
        P.e("v_add_f32", vr(dst), vr(dst), vr(t))
    redsum(MT, 236, 237)
    redsum(M, 238, 239)
    P.e("v_lshlrev_b32", "v240", 2, "v233")
    P.e("ds_write_b32", "v240", "v236")
    P.fence("s_waitcnt", "lgkmcnt(0)")
    P.fence("s_barrier")
    RSB = 64
    P.e("v_lshlrev_b32", "v241", 5, "v4")
    for s in range(3):
        P.e("ds_read_b128", vr(RSB + 8 * s, 4), "v241", mods=f"offset:{128*s}")
        P.e("ds_read_b128", vr(RSB + 8 * s + 4, 4), "v241", mods=f"offset:{128*s+16}")
    redsum(RSB, 242, 243)
    P.e("v_mul_f32", "v238", f2u(1.0 / 96), "v238")
    P.e("v_fmamk_f32", "v238", "v242", f2u(-1.0 / 9216), "v238")
    P.e("s_mov_b32", "s43", NEG_INV96)
    for s in range(3):
        for j in range(8):
            m = M + 8 * s + j
            P.e("v_fma_f32", vr(m), vr(RSB + 8 * s + j), "s43", vr(m))
            P.e("v_sub_f32", vr(m), vr(m), "v238")
        for j in range(4):
            cvtpk(P, RSB + 24 + 4 * s + j, M + 8 * s + 2 * j, M + 8 * s + 2 * j + 1)
    P.e("s_mov_b32", "s44", "s38")
    for s in range(3):
        P.e("buffer_store_dwordx4", vr(RSB + 24 + 4 * s, 4), "v12", "s[16:19]", "s44", mods="offen")
        P.e("s_add_u32", "s44", "s44", "s34")
    P.fence("s_endpgm")
    out += finalize(P.ins, sched=False)

    P = Prog()
    P.label("PREP_B")
    WV = 64
    WO = 136
    WT = 160
    SEL = 172
    D2 = 176
    D = 16
    P.e("v_mul_u32_u24", "v15", 576, "v7")
    P.e("v_lshl_add_u32", "v15", "v4", 4, "v15")
    for v in range(6):
        ro = (32 * (v >> 1) + 4 * (v & 1)) * 576
        P.e("s_mov_b32", "s41", ro)
        for k in range(3):
            P.e("buffer_load_dwordx4", vr(WV + (v * 3 + k) * 4, 4), "v15", "s[8:11]", "s41", mods=f"offen offset:{384+64*k}")
    P.e("v_mul_u32_u24", "v232", 192, "v7")
    P.e("v_lshl_add_u32", "v232", "v4", 4, "v232")
    P.e("s_lshl_b32", "s42", "s22", 1)
    P.e("v_add_u32", "v232", "s42", "v232")
    for v in range(6):
        ro = (32 * (v >> 1) + 4 * (v & 1)) * 192
        P.e("s_mov_b32", "s41", ro)
        P.e("buffer_load_dwordx4", vr(WO + 4 * v, 4), "v232", "s[8:11]".replace("8:11", "12:15"), "s41", mods="offen")
    P.e("v_lshrrev_b32", "v233", 3, "v8")
    P.e("v_and_b32", "v234", 7, "v8")
    P.e("v_and_b32", "v235", 1, "v234")
    P.e("v_lshlrev_b32", "v235", 4, "v235")
    P.e("v_mov_b32", "v236", 0x3F80)
    P.e("v_lshlrev_b32", "v236", "v235", "v236")
    P.e("v_cmp_eq_u32_e64", "s[46:47]", "v233", "v4")
    P.e("v_cndmask_b32_e64", "v236", 0, "v236", "s[46:47]")
    P.e("v_lshrrev_b32", "v234", 1, "v234")
    for r in range(4):
        P.e("v_cmp_eq_u32_e64", "s[46:47]", r, "v234")
        P.e("v_cndmask_b32_e64", vr(SEL + r), 0, "v236", "s[46:47]")
    for v in range(6):
        mfma16(P, D2 + 4 * v, WO + 4 * v, SEL, None)
    for k in range(3):
        for j in range(4):
            cvtpk(P, WT + 4 * k + j, D2 + 8 * k + 2 * j, D2 + 8 * k + 2 * j + 1)
    for v in range(6):
        for k in range(3):
            mfma16(P, D + 4 * v, WV + (v * 3 + k) * 4, WT + 4 * k, None if k == 0 else D + 4 * v)
    redsum(D, 238, 239)
    P.e("v_mul_f32", "v238", f2u(1.0 / 96), "v238")
    sq = f2u(math.sqrt(96.0))
    for s in range(3):
        for j in range(8):
            m = D + 8 * s + j
            P.e("v_sub_f32", vr(m), vr(m), "v238")
            P.e("v_mul_f32", vr(m), sq, vr(m))
        for j in range(4):
            cvtpk(P, 200 + 4 * s + j, D + 8 * s + 2 * j, D + 8 * s + 2 * j + 1)
    P.e("s_mov_b32", "s44", "s38")
    for s in range(3):
        P.e("buffer_store_dwordx4", vr(200 + 4 * s, 4), "v12", "s[16:19]", "s44", mods="offen")
        P.e("s_add_u32", "s44", "s44", "s34")
    P.label("PREP_END")
    P.fence("s_endpgm")
    out += finalize(P.ins, sched=False)
    return out


class TR: pass

def t_stats(P, SX, GR, R, t0):
    P.e("v_cndmask_b32_e64", vr(t0), vr(GR), vr(GR + 1), "s[32:33]")
    P.e("v_mul_f32", vr(R), vr(SX), vr(SX))
    P.e("v_cndmask_b32_e64", vr(t0), vr(t0), vr(GR + 2), "s[34:35]")
    P.e("v_cndmask_b32_e64", vr(t0), vr(t0), vr(GR + 3), "s[36:37]")
    P.e("v_fma_f32", vr(R), vr(R), "s28", vr(t0))
    P.e("v_add_f32", vr(R), EPS96, vr(R))
    P.e("v_max_f32", vr(R), EPS96, vr(R))
    P.e("v_rsq_f32", vr(R), vr(R))

def t_tile(P, r, XB, xa, xoff, ra, raoff, tag, load=True):
    if load:
        for s in range(3):
            P.e("ds_read_b128", vr(XB + 4 * s, 4), vr(xa), mods=f"offset:{xoff + 64*s}", mem=(tag, "r"))
    for s in range(3):
        mfma16(P, r.SC, r.ONES, XB + 4 * s, None if s == 0 else r.SC)
    for s in range(3):
        mfma16(P, r.GR, XB + 4 * s, XB + 4 * s, None if s == 0 else r.GR)
    for u in range(6):
        for s in range(3):
            mfma16(P, r.GA + 4 * u, r.WA + (u * 3 + s) * 4, XB + 4 * s, None if s == 0 else r.GA + 4 * u)
    t_stats(P, r.SC, r.GR, r.R1, r.T0)
    for s in range(3):
        for j in range(4):
            cvtpk(P, r.GA + 8 * s + j, r.GA + 8 * s + 2 * j, r.GA + 8 * s + 2 * j + 1)
    for s in range(3):
        mfma16(P, r.SC, XB + 4 * s, r.GA + 8 * s, None if s == 0 else r.SC)
    for t in range(6):
        for s in range(3):
            mfma16(P, r.YC + 4 * t, XB + 4 * s, r.WB + (t * 3 + s) * 4, None if s == 0 else r.YC + 4 * t)
    for t in range(6):
        cvtpk(P, r.YA + 2 * t, r.YC + 4 * t, r.YC + 4 * t + 1)
        cvtpk(P, r.YA + 2 * t + 1, r.YC + 4 * t + 2, r.YC + 4 * t + 3)
    qp = lambda k: f"quad_perm:[{k},{k},{k},{k}] row_mask:0xf bank_mask:0xf"
    for k in range(4):
        P.e("v_mul_f32_dpp", vr(r.SC + k), vr(r.R1), vr(r.SC + k), mods=qp(k))
    P.e("v_max3_f32", vr(r.MX), vr(r.SC), vr(r.SC + 1), vr(r.SC + 2))
    P.e("v_mul_f32", vr(r.CI), "s27", vr(r.R1))
    P.e("v_max_f32", vr(r.MX), vr(r.MX), vr(r.SC + 3))
    P.e("v_mul_f32", vr(r.MX), vr(r.MX), vr(r.CI))
    for k in range(4):
        P.e("v_fma_f32", vr(r.SC + k), vr(r.SC + k), vr(r.CI), "-" + vr(r.MX))
    for k in range(4):
        P.e("v_exp_f32", vr(r.SC + k), vr(r.SC + k))
    P.e("v_add_f32", vr(r.L), vr(r.SC), vr(r.SC + 1))
    P.e("v_add_f32", vr(r.MX), vr(r.SC + 2), vr(r.SC + 3))
    P.e("v_add_f32", vr(r.L), vr(r.L), vr(r.MX))
    P.e("v_rcp_f32", vr(r.L), vr(r.L))
    for k in range(4):
        P.e("v_mul_f32_dpp", vr(r.SC + k), vr(r.R1), vr(r.SC + k), mods=qp(k))
    P.e("v_cndmask_b32_e64", vr(r.L), 0, vr(r.L), "s[30:31]")
    for k in range(4):
        P.e("v_mul_f32", vr(r.SC + k), vr(r.SC + k), vr(r.L))
    cvtpk(P, r.PB, r.SC, r.SC + 1)
    cvtpk(P, r.PB + 1, r.SC + 2, r.SC + 3)
    A = r.YC
    for s in range(3):
        for j in range(4):
            P.e("v_lshlrev_b32", vr(A + 8 * s + 2 * j), 16, vr(XB + 4 * s + j))
            P.e("v_and_b32", vr(A + 8 * s + 2 * j + 1), 0xFFFF0000, vr(XB + 4 * s + j))
    if OPT["mode"] != "copy":
        for t in range(6):
            mfma16k16(P, A + 4 * t, r.YA + 2 * t, r.PB, A + 4 * t)
    for s in range(3):
        for j in range(4):
            cvtpk(P, A + 8 * s + j, A + 8 * s + 2 * j, A + 8 * s + 2 * j + 1)
    for s in range(3):
        P.e("ds_write_b128", vr(xa), vr(A + 8 * s, 4), mods=f"offset:{xoff + 64*s}", mem=(tag, "w"))
    SX2, GR2 = r.YA, r.YA + 4
    for s in range(3):
        mfma16(P, SX2, r.ONES, A + 8 * s, None if s == 0 else SX2)
    for s in range(3):
        mfma16(P, GR2, A + 8 * s, A + 8 * s, None if s == 0 else GR2)
    t_stats(P, SX2, GR2, r.YA + 8, r.YA + 9)
    P.e("ds_write_b32", vr(ra), vr(r.YA + 8), mods=f"offset:{raoff}", mem=(tag + "r", "w"))

def t_regs():
    r = TR()
    r.XA = [1, 2, 3]; r.RA = 4
    r.R1, r.MX, r.CI = 5, 6, 7
    r.ONES = 8
    r.SC = 12; r.GR = 16
    r.L, r.T0 = 20, 21
    r.PB = 24
    r.XB = [28, 40]
    r.GA = 52; r.YC = 76; r.YA = 100
    r.WA = 112; r.WB = 184
    return r

def load_t_weights(P, r, vaddr):
    for k in range(18):
        P.e("ds_read_b128", vr(r.WA + 4 * k, 4), vr(vaddr), mods=f"offset:{L_WAT + 1024*k}")
    for k in range(18):
        P.e("ds_read_b128", vr(r.WB + 4 * k, 4), vr(vaddr), mods=f"offset:{L_WBT + 1024*k}")
    for k in range(4):
        P.e("v_mov_b32", vr(r.ONES + k), 0x3F803F80)

def t_consts(P):
    P.e("s_mov_b32", "s27", C_SCALE)
    P.e("s_mov_b32", "s28", NEG_INV96)
    P.e("s_mov_b32", "s30", 0x00F0000F); P.e("s_mov_b32", "s31", 0xF0000F00)
    P.e("s_mov_b32", "s32", 0x22222222); P.e("s_mov_b32", "s33", 0x22222222)
    P.e("s_mov_b32", "s34", 0x44444444); P.e("s_mov_b32", "s35", 0x44444444)
    P.e("s_mov_b32", "s36", 0x88888888); P.e("s_mov_b32", "s37", 0x88888888)


class SR: pass

def s_regs():
    r = SR()
    r.A0E, r.EXT, r.RJ, r.RI, r.OA0, r.OA1, r.W = 1, 2, 3, 4, 5, 6, 7
    r.CI = [8, 9]; r.MX, r.TM, r.NM, r.L = 10, 11, 12, 13
    r.MX2, r.L2 = 14, 15
    r.XB = 20; r.YA = 68; r.GB = 116; r.SC = 164; r.RW = 228
    return r

def s_segA(P, r):
    T = r.SC
    a0e, a0o, a1e, a1o = r.A0E, T, T + 1, T + 2
    P.e("v_xor_b32", vr(a0o), 32, vr(a0e))
    P.e("v_add_u32", vr(a1e), 6144, vr(a0e))
    P.e("v_cndmask_b32_e64", vr(a1e), vr(a1e), vr(r.EXT), "s[40:41]")
    P.e("v_xor_b32", vr(a1o), 32, vr(a1e))
    for s in range(6):
        P.e("ds_read_b128", vr(r.XB + 4 * s, 4), vr(a0e if s % 2 == 0 else a0o), mods=f"offset:{64*(s>>1)}")
    for s in range(6):
        P.e("ds_read_b128", vr(r.XB + 24 + 4 * s, 4), vr(a1e if s % 2 == 0 else a1o), mods=f"offset:{64*(s>>1)}")
    P.e("v_add_u32", vr(T + 3), "s42", vr(r.W))
    P.e("ds_read_b128", vr(T + 4, 4), vr(T + 3))
    P.e("ds_read_b128", vr(T + 8, 4), vr(T + 3), mods="offset:1024")
    P.e("v_subrev_u32", vr(T + 13), L_WAS, vr(r.W))
    P.e("v_lshrrev_b32", vr(T + 13), 2, vr(T + 13))
    P.e("v_add_u32", vr(T + 13), "s43", vr(T + 13))
    P.e("ds_read_b32", vr(T + 12), vr(T + 13))

def s_dma(P, r, m0reg, soff, tabbase):
    nt = " nt" if OPT["xnt"] else ""
    for i in range(9):
        P.e("s_add_u32", "m0", sr(m0reg), 1024 * i)
        extra = [("v", r.XB + k) for k in range(48)] if i == 0 else None
        P.e("buffer_load_dwordx4", vr(tabbase + i), "s[8:11]", sr(soff), mods="offen" + nt + " lds", rd=extra)

def s_body(P, r):
    XB = lambda mt, s: r.XB + 24 * mt + 4 * s
    YA = lambda kt, ct, z: r.YA + 24 * kt + 8 * ct + 4 * z
    GB = lambda qt, s: r.GB + 24 * qt + 4 * s
    SC = lambda qt, kt: r.SC + 32 * qt + 16 * kt
    ring = [r.RW + 4 * k for k in range(7)]
    rp = [0]
    def wfrag(off):
        d = ring[rp[0] % 7]; rp[0] += 1
        P.e("ds_read_b128", vr(d, 4), vr(r.W), mods=f"offset:{off}")
        return d
    acc_slots = [r.SC + 16 * k for k in range(4)]
    ap = [0]
    def acc():
        a = acc_slots[ap[0] % 4]; ap[0] += 1
        return a
    for ct in range(3):
        a0, a1 = acc(), acc()
        for s in range(6):
            w = wfrag(L_WBS - L_WAS + (ct * 6 + s) * 1024)
            mfma32(P, a0, XB(0, s), w, None if s == 0 else a0)
            mfma32(P, a1, XB(1, s), w, None if s == 0 else a1)
        for kt, a in ((0, a0), (1, a1)):
            for j in range(8):
                cvtpk(P, YA(kt, ct, 0) + j, a + 2 * j, a + 2 * j + 1)
    for t in range(3):
        a0, a1 = acc(), acc()
        for s in range(6):
            w = wfrag((t * 6 + s) * 1024)
            mfma32(P, a0, w, XB(0, s), None if s == 0 else a0)
            mfma32(P, a1, w, XB(1, s), None if s == 0 else a1)
        for qt, a in ((0, a0), (1, a1)):
            for j in range(8):
                cvtpk(P, GB(qt, 2 * t) + j, a + 2 * j, a + 2 * j + 1)
    RJ = r.RW
    for g in range(4):
        P.e("ds_read_b128", vr(RJ + 4 * g, 4), vr(r.RJ), mods=f"offset:{32*g}")
    for g in range(3):
        P.e("ds_read_b128", vr(RJ + 16 + 4 * g, 4), vr(r.RJ), mods=f"offset:{128 + 32*g}")
    for qt in range(2):
        P.e("ds_read_b32", vr(r.CI[qt]), vr(r.RI), mods=f"offset:{128*qt}")
    for qt in range(2):
        for kt in range(2):
            for s in range(6):
                mfma32(P, SC(qt, kt), XB(kt, s), GB(qt, s), None if s == 0 else SC(qt, kt))
    O = r.GB
    for qt in range(2):
        MX, L = (r.MX, r.L) if qt == 0 else (r.MX2, r.L2)
        vals = [SC(qt, 0) + k for k in range(16)] + [SC(qt, 1) + k for k in range(9)]
        for k, v in enumerate(vals):
            P.e("v_mul_f32", vr(v), vr(v), vr(RJ + k))
        P.e("v_cndmask_b32_e64", vr(vals[24]), vr(vals[24]), vr(vals[23]), "s[38:39]")
        P.e("v_mul_f32", vr(r.CI[qt]), "s27", vr(r.CI[qt]))
        P.e("v_max3_f32", vr(MX), vr(vals[0]), vr(vals[1]), vr(vals[2]))
        P.e("v_max3_f32", vr(r.TM), vr(vals[3]), vr(vals[4]), vr(vals[5]))
        k = 6
        tog = 0
        while k + 1 < 25:
            d = MX if tog == 0 else r.TM
            P.e("v_max3_f32", vr(d), vr(d), vr(vals[k]), vr(vals[k + 1])); k += 2; tog ^= 1
        P.e("v_max3_f32", vr(MX), vr(MX), vr(r.TM), vr(vals[24]))
        P.e("v_mov_b32", vr(r.TM), vr(MX))
        P.e("v_permlane32_swap_b32", vr(MX), vr(r.TM))
        P.e("v_max_f32", vr(MX), vr(MX), vr(r.TM))
        P.e("v_mul_f32", vr(MX), vr(MX), vr(r.CI[qt]))
        for v in vals:
            P.e("v_fma_f32", vr(v), vr(v), vr(r.CI[qt]), "-" + vr(MX))
        for v in vals:
            P.e("v_exp_f32", vr(v), vr(v))
        P.e("v_cndmask_b32_e64", vr(vals[24]), vr(vals[24]), 0, "s[38:39]")
        P.e("v_add_f32", vr(L), vr(vals[0]), vr(vals[1]))
        P.e("v_add_f32", vr(r.NM), vr(vals[2]), vr(vals[3]))
        for k in range(4, 25):
            d = L if k % 2 == 0 else r.NM
            P.e("v_add_f32", vr(d), vr(d), vr(vals[k]))
        P.e("v_add_f32", vr(L), vr(L), vr(r.NM))
        P.e("v_mov_b32", vr(r.NM), vr(L))
        P.e("v_permlane32_swap_b32", vr(L), vr(r.NM))
        P.e("v_add_f32", vr(L), vr(L), vr(r.NM))
        P.e("v_rcp_f32", vr(L), vr(L))
        for k, v in enumerate(vals):
            P.e("v_mul_f32", vr(v), vr(v), vr(RJ + k))
        for k, v in enumerate(vals):
            P.e("v_mul_f32", vr(v), vr(v), vr(L))
        p0, p1 = SC(qt, 0), SC(qt, 1)
        for j in range(8):
            cvtpk(P, p0 + j, p0 + 2 * j, p0 + 2 * j + 1)
        for j in range(4):
            cvtpk(P, p1 + j, p1 + 2 * j, p1 + 2 * j + 1)
        cvtpk(P, p1 + 4, p1 + 8, "0")
        for j in range(5, 8):
            P.e("v_mov_b32", vr(p1 + j), 0)
        PB = lambda kt, z: (p0 if kt == 0 else p1) + 4 * z
        for ct in range(3):
            for half in range(2):
                for j in range(4):
                    src = XB(qt, 2 * ct + half) + j
                    P.e("v_lshlrev_b32", vr(O + 16 * ct + 8 * half + 2 * j), 16, vr(src))
                    P.e("v_and_b32", vr(O + 16 * ct + 8 * half + 2 * j + 1), 0xFFFF0000, vr(src))
        if OPT["mode"] == "full":
            for ct in range(3):
                for kt in range(2):
                    for z in range(2):
                        mfma32(P, O + 16 * ct, YA(kt, ct, z), PB(kt, z), O + 16 * ct)
        snt = " nt" if OPT["snt"] else ""
        for ct in range(3):
            for half in range(2):
                b = O + 16 * ct + 8 * half
                d = O + 16 * ct + 4 * half if False else b
                for j in range(4):
                    cvtpk(P, b + j, b + 2 * j, b + 2 * j + 1)
                P.e("buffer_store_dwordx4", vr(b, 4), vr(r.OA0 if qt == 0 else r.OA1), "s[12:15]", "s24",
                    mods=f"offen offset:{32*(2*ct+half)}" + snt)


def stamp(P, slot):
    if not OPT["stamps"]: return
    P.fence("s_memtime", "s[52:53]")
    P.fence("s_waitcnt", "lgkmcnt(0)")
    P.raw(f"  v_mov_b32 v19, s52")
    P.raw(f"  v_mov_b32 v18, s54")
    P.raw(f"  buffer_store_dword v19, v18, s[56:59], 0 offen")
    P.raw(f"  s_add_u32 s54, s54, 4")


def gen_main():
    out = []
    P = Prog()
    P.label("standalone__video_video_swin__vision_kernel")
    P.e("s_cmp_ge_u32", "s2", 256)
    P.fence("s_cbranch_scc1", "MAIN_END")
    P.e("s_load_dwordx2", "s[4:5]", "s[0:1]", 0)
    P.e("s_load_dwordx4", "s[44:47]", "s[0:1]", 40)
    P.e("s_load_dwordx2", "s[6:7]", "s[0:1]", 56)
    P.e("v_lshrrev_b32", "v1", 6, "v0")
    P.e("v_and_b32", "v0", 63, "v0")
    P.e("s_nop", 0)
    P.e("v_readfirstlane_b32", "s20", "v1")
    P.e("s_lshr_b32", "s21", "s2", 3)
    P.e("s_and_b32", "s22", "s2", 7)
    P.e("s_mul_i32", "s21", "s21", 7 * RS)
    P.e("s_mul_i32", "s22", "s22", 5376)
    P.e("s_add_u32", "s22", "s22", "s21")
    P.fence("s_waitcnt", "lgkmcnt(0)")
    srd(P, 8, 4, NBYTES)
    srd(P, 12, 44, NBYTES)
    srd(P, 16, 6, 73728)
    if OPT["stamps"]:
        srd(P, 56, 46, 256)
        P.e("s_lshl_b32", "s54", "s20", 5)
        P.e("s_cmp_eq_u32", "s2", 0)
        P.e("s_cselect_b32", "s54", "s54", 0x10000)
    t_consts(P)
    P.e("s_mov_b32", "s38", 0); P.e("s_mov_b32", "s39", -1)
    P.e("s_mov_b32", "s40", 0xFFFF0000); P.e("s_mov_b32", "s41", 0xFFFF0000)
    P.e("s_mov_b32", "s25", 0)
    P.e("s_mov_b32", "s26", BUFSZ)
    P.e("s_cmp_ge_u32", "s20", 4)
    P.fence("s_cbranch_scc1", "S_PRO")
    out += finalize(P.ins, sched=False)

    r = t_regs()
    P = Prog()
    stamp(P, 0)
    P.e("v_lshlrev_b32", "v20", 4, "v0")
    P.e("s_mul_i32", "s48", "s20", 9216)
    for half in range(2):
        for i in range(9):
            off = half * 36864 + 1024 * i
            P.e("s_add_u32", "s49", "s48", off)
            P.e("s_mov_b32", "m0", "s49")
            P.e("buffer_load_dwordx4", "v20", "s[16:19]", "s49", mods="offen lds")
    for k in range(4):
        P.e("v_mov_b32", vr(24 + k), 0)
    P.e("s_lshl_b32", "s49", "s20", 10)
    P.e("s_add_u32", "s49", "s49", L_RBUF)
    P.e("v_add_u32", "v21", "s49", "v20")
    P.e("ds_write_b128", "v21", "v[24:27]")
    P.e("v_and_b32", "v22", 15, "v0"); P.e("v_lshrrev_b32", "v23", 4, "v0")
    P.e("v_and_b32", "v24", 3, "v22"); P.e("v_lshrrev_b32", "v25", 2, "v22")
    P.e("s_mul_i32", "s49", "s20", 12)
    P.e("v_add_u32", "v26", "s49", "v25")
    P.e("v_mul_u32_u24", "v27", 192, "v26")
    P.e("v_mul_u32_u24", "v28", FRSZ, "v24")
    P.e("v_add_u32", "v27", "v27", "v28")
    P.e("v_add_u32", "v27", L_BUF0, "v27")
    P.e("v_xor_b32", "v28", "v23", "v24")
    P.e("s_mul_i32", "s49", "s20", 3)
    for i in range(3):
        P.e("s_add_u32", "s50", "s49", i); P.e("s_and_b32", "s50", "s50", 3)
        P.e("v_xor_b32", "v29", "s50", "v28")
        P.e("v_lshl_add_u32", vr(r.XA[i]), "v29", 4, "v27")
    P.e("v_add_u32", "v29", 49, "v23")
    P.e("v_cndmask_b32_e64", "v29", "v29", "v26", "s[30:31]")
    P.e("v_lshlrev_b32", "v29", 2, "v29")
    P.e("v_lshl_add_u32", "v29", "v24", 8, "v29")
    P.e("v_add_u32", vr(r.RA), L_RBUF, "v29")
    P.fence("s_waitcnt", "vmcnt(9) lgkmcnt(0)")
    P.fence("s_barrier")
    load_t_weights(P, r, 20)
    out += finalize(P.ins, sched=False)
    P = Prog()
    stamp(P, 1)
    P.label("T_LOOP")
    for i in range(3):
        t_tile(P, r, r.XB[i & 1], r.XA[i], 768 * i, r.RA, 16 * i, f"x{i}")
    for i in range(3):
        P.e("v_add_u32", vr(r.XA[i]), "s26", vr(r.XA[i]))
    P.e("v_add_u32", vr(r.RA), 1024, vr(r.RA))
    P.e("s_sub_u32", "s26", 0, "s26")
    P.e("s_add_u32", "s25", "s25", 1)
    P.fence("s_waitcnt", "vmcnt(0) lgkmcnt(0)")
    stamp(P, 2)
    P.fence("s_barrier")
    P.e("s_cmp_lt_u32", "s25", 4)
    P.fence("s_cbranch_scc1", "T_LOOP")
    P.fence("s_endpgm")
    out += finalize(P.ins, sched=OPT["sched"], loop=True, verbose=True, pipe_share=0.6, issue_share=0.6)

    r = s_regs()
    P = Prog()
    P.label("S_PRO")
    stamp(P, 0)
    P.e("s_sub_u32", "s21", "s20", 4)
    TB = 30
    for i in range(9):
        P.e("v_add_u32", "v40", 64 * i, "v0")
        P.e("v_mul_u32_u24", "v41", 5462, "v40")
        P.e("v_lshrrev_b32", "v41", 16, "v41")
        P.e("v_mul_u32_u24", "v42", 12, "v41")
        P.e("v_sub_u32", "v42", "v40", "v42")
        P.e("v_mul_u32_u24", "v43", 9363, "v41")
        P.e("v_lshrrev_b32", "v43", 16, "v43")
        P.e("v_mul_u32_u24", "v44", 7, "v43")
        P.e("v_sub_u32", "v44", "v41", "v44")
        P.e("v_bfe_u32", "v45", "v41", 2, 2)
        P.e("v_xor_b32", "v45", "s21", "v45")
        P.e("v_xor_b32", "v45", "v45", "v42")
        P.e("v_mul_u32_u24", "v43", RS, "v43")
        P.e("v_mul_u32_u24", "v44", 192, "v44")
        P.e("v_add_u32", "v43", "v43", "v44")
        P.e("v_lshl_add_u32", vr(TB + i), "v45", 4, "v43")
    P.e("s_mul_i32", "s49", "s21", FS)
    P.e("s_add_u32", "s23", "s22", "s49")
    P.e("s_mov_b32", "s24", "s23")
    P.e("s_mul_i32", "s50", "s21", FRSZ)
    P.e("s_add_u32", "s51", "s50", L_BUF0)
    nt = " nt" if OPT["xnt"] else ""
    for i in range(9):
        P.e("s_add_u32", "m0", "s51", 1024 * i)
        P.e("buffer_load_dwordx4", vr(TB + i), "s[8:11]", "s23", mods="offen" + nt + " lds")
    P.e("s_cmp_ge_u32", "s21", 3)
    P.fence("s_cbranch_scc1", "S_NOEXT")
    P.e("s_lshl_b32", "s49", "s21", 6)
    P.e("v_add_u32", "v40", "s49", "v0")
    P.e("v_mul_u32_u24", "v41", 5462, "v40")
    P.e("v_lshrrev_b32", "v41", 16, "v41")
    P.e("v_mul_u32_u24", "v42", 12, "v41")
    P.e("v_sub_u32", "v42", "v40", "v42")
    P.e("v_and_b32", "v43", 3, "v41")
    P.e("v_lshrrev_b32", "v44", 2, "v41")
    P.e("v_xor_b32", "v45", "v42", "v43")
    P.e("s_mov_b32", "s48", FS)
    P.e("v_mul_lo_u32", "v43", "v43", "s48")
    P.e("v_mul_u32_u24", "v44", 1344, "v44")
    P.e("v_add_u32", "v43", "v43", "v44")
    P.e("v_lshl_add_u32", "v43", "v45", 4, "v43")
    P.e("v_add_u32", "v43", 6 * RS + 6 * 192, "v43")
    P.e("s_lshl_b32", "s49", "s21", 10)
    P.e("s_add_u32", "m0", "s49", L_EXT)
    P.e("buffer_load_dwordx4", "v43", "s[8:11]", "s22", mods="offen lds")
    P.label("S_NOEXT")
    P.e("s_add_u32", "s23", "s23", 1344)
    P.e("s_add_u32", "s51", "s50", L_BUF1)
    for i in range(9):
        P.e("s_add_u32", "m0", "s51", 1024 * i)
        P.e("buffer_load_dwordx4", vr(TB + i), "s[8:11]", "s23", mods="offen" + nt + " lds")
    P.e("s_add_u32", "s23", "s23", 1344)
    P.e("s_mul_i32", "s49", "s21", 2304)
    P.e("s_add_u32", "s49", "s49", L_TAB)
    P.e("v_lshlrev_b32", "v46", 4, "v0")
    P.e("v_add_u32", "v47", "s49", "v46")
    P.e("v_mov_b32", "v48", vr(TB)); P.e("v_mov_b32", "v49", vr(TB + 1)); P.e("v_mov_b32", "v50", vr(TB + 2)); P.e("v_mov_b32", "v51", vr(TB + 3))
    P.e("ds_write_b128", "v47", "v[48:51]")
    P.e("v_mov_b32", "v52", vr(TB + 4)); P.e("v_mov_b32", "v53", vr(TB + 5)); P.e("v_mov_b32", "v54", vr(TB + 6)); P.e("v_mov_b32", "v55", vr(TB + 7))
    P.e("ds_write_b128", "v47", "v[52:55]", mods="offset:1024")
    P.e("s_add_u32", "s43", "s49", 2048)
    P.e("v_lshlrev_b32", "v47", 2, "v0")
    P.e("v_add_u32", "v47", "s43", "v47")
    P.e("ds_write_b32", "v47", vr(TB + 8))
    P.e("s_sub_u32", "s42", "s49", L_WAS)
    P.e("v_and_b32", "v56", 31, "v0"); P.e("v_lshrrev_b32", "v57", 5, "v0")
    P.e("v_add_u32", vr(r.W), L_WAS, "v46")
    P.e("v_bfe_u32", "v58", "v56", 2, 2)
    P.e("v_xor_b32", "v58", "s21", "v58")
    P.e("v_xor_b32", "v58", "v58", "v57")
    P.e("v_mul_u32_u24", "v59", 192, "v56")
    P.e("v_lshl_add_u32", "v59", "v58", 4, "v59")
    P.e("s_add_u32", "s49", "s50", L_BUF0)
    P.e("v_add_u32", vr(r.A0E), "s49", "v59")
    P.e("v_xor_b32", "v58", "s21", "v57")
    P.e("v_lshlrev_b32", "v58", 4, "v58")
    P.e("s_mul_i32", "s49", "s21", 192)
    P.e("s_add_u32", "s49", "s49", L_EXT)
    P.e("v_add_u32", vr(r.EXT), "s49", "v58")
    P.e("s_lshl_b32", "s49", "s21", 8)
    P.e("s_add_u32", "s49", "s49", L_RBUF)
    P.e("v_lshlrev_b32", "v58", 4, "v57")
    P.e("v_add_u32", vr(r.RJ), "s49", "v58")
    P.e("v_lshlrev_b32", "v58", 2, "v56")
    P.e("v_add_u32", vr(r.RI), "s49", "v58")
    for qt in range(2):
        P.e("v_add_u32", "v58", 32 * qt, "v56")
        P.e("v_mul_u32_u24", "v59", 9363, "v58")
        P.e("v_lshrrev_b32", "v59", 16, "v59")
        P.e("v_mul_u32_u24", "v60", 7, "v59")
        P.e("v_sub_u32", "v60", "v58", "v60")
        P.e("v_mul_u32_u24", "v59", RS, "v59")
        P.e("v_mul_u32_u24", "v60", 192, "v60")
        P.e("v_add_u32", "v59", "v59", "v60")
        P.e("v_lshl_add_u32", "v59", "v57", 4, "v59")
        P.e("v_cmp_gt_u32_e64", "s[48:49]", 49, "v58")
        P.e("v_mov_b32", "v60", 0x80000000)
        P.e("v_cndmask_b32_e64", vr(r.OA0 + qt), "v60", "v59", "s[48:49]")
    P.fence("s_waitcnt", "vmcnt(9) lgkmcnt(0)")
    P.fence("s_barrier")
    P.e("s_cmp_lg_u32", "s20", 4)
    P.fence("s_cbranch_scc1", "S_R0_DONE")
    out += finalize(P.ins, sched=False)

    P = Prog()
    tr = t_regs()
    tr.R1, tr.MX, tr.CI = 22, 23, 26
    XAe, RAe, L16 = 40, 41, 42
    P.e("v_lshlrev_b32", vr(L16), 4, "v0")
    load_t_weights(P, tr, L16)
    P.e("v_and_b32", "v43", 15, "v0"); P.e("v_lshrrev_b32", "v44", 4, "v0")
    P.e("v_and_b32", "v45", 3, "v43"); P.e("v_lshrrev_b32", "v46", 2, "v43")
    P.e("v_mul_u32_u24", "v47", 192, "v43")
    P.e("v_xor_b32", "v48", "v44", "v45")
    P.e("v_lshl_add_u32", "v47", "v48", 4, "v47")
    P.e("v_add_u32", vr(XAe), L_EXT, "v47")
    P.e("v_lshlrev_b32", "v47", 8, "v46")
    P.e("v_add_u32", "v47", 48, "v47")
    P.e("v_add_u32", "v48", 52, "v44")
    P.e("v_cndmask_b32_e64", "v47", "v48", "v47", "s[30:31]")
    P.e("v_lshlrev_b32", "v47", 2, "v47")
    P.e("v_lshl_add_u32", "v47", "v45", 8, "v47")
    P.e("v_add_u32", vr(RAe), L_RBUF, "v47")
    t_tile(P, tr, tr.XB[0], XAe, 0, RAe, 0, "ext")
    out += finalize(P.ins, sched=OPT["sched"], verbose=True)

    P = Prog()
    P.label("S_R0_DONE")
    P.fence("s_waitcnt", "vmcnt(0) lgkmcnt(0)")
    stamp(P, 1)
    P.fence("s_barrier")
    P.e("s_mov_b32", "s25", 1)
    if OPT["prioS"]:
        P.fence("s_setprio", OPT["prioS"])
    P.label("S_LOOP")
    s_segA(P, r)
    P.fence("s_waitcnt", "lgkmcnt(0)")
    P.e("s_cmp_ge_u32", "s25", 3)
    P.fence("s_cbranch_scc1", "S_NODMA")
    P.e("s_and_b32", "s49", "s25", 1)
    P.e("s_xor_b32", "s49", "s49", 1)
    P.e("s_mul_i32", "s49", "s49", BUFSZ)
    P.e("s_add_u32", "s51", "s49", "s50")
    P.e("s_add_u32", "s51", "s51", L_BUF0)
    s_dma(P, r, 51, 23, r.SC + 4)
    P.e("s_add_u32", "s23", "s23", 1344)
    P.label("S_NODMA")
    s_body(P, r)
    P.e("v_add_u32", vr(r.A0E), "s26", vr(r.A0E))
    P.e("v_add_u32", vr(r.EXT), 768, vr(r.EXT))
    P.e("v_add_u32", vr(r.RJ), 1024, vr(r.RJ))
    P.e("v_add_u32", vr(r.RI), 1024, vr(r.RI))
    P.e("s_sub_u32", "s26", 0, "s26")
    P.e("s_add_u32", "s24", "s24", 1344)
    P.e("s_add_u32", "s25", "s25", 1)
    P.fence("s_waitcnt", "vmcnt(12) lgkmcnt(0)")
    stamp(P, 3)
    P.e("s_cmp_ge_u32", "s25", 5)
    P.fence("s_cbranch_scc1", "MAIN_END")
    P.fence("s_barrier")
    P.fence("s_branch", "S_LOOP")
    P.label("MAIN_END")
    P.fence("s_endpgm")
    out += finalize(P.ins, sched=OPT["sched"], loop=False, verbose=True, pipe_share=0.6, issue_share=0.6)
    return out


HEADER = """; Video-Swin block (temporal attention + 7x7 window attention), LN and projections folded.
; @launch kernel=prep_kernel grid=(4,1,1) block=(384,1,1) lds=512
; @launch kernel=standalone__video_video_swin__vision_kernel grid=(256,1,1) block=(512,1,1) lds=163840
.amdgcn_target "amdgcn-amd-amdhsa--gfx950"
.text
"""

def kd(name):
    return f""".amdhsa_kernel {name}
  .amdhsa_next_free_vgpr 256
  .amdhsa_next_free_sgpr 102
  .amdhsa_accum_offset 256
  .amdhsa_group_segment_fixed_size 0
  .amdhsa_kernarg_size 64
  .amdhsa_user_sgpr_count 2
  .amdhsa_user_sgpr_kernarg_segment_ptr 1
  .amdhsa_system_sgpr_workgroup_id_x 1
.end_amdhsa_kernel
"""

def build(path):
    txt = HEADER
    for name, ins in (("prep_kernel", gen_prep()), ("standalone__video_video_swin__vision_kernel", gen_main())):
        txt += f".globl {name}\n.p2align 8\n.type {name},@function\n"
        txt += text(ins)
    txt += '.section .rodata,"a"\n.p2align 6\n'
    txt += kd("prep_kernel") + ".p2align 6\n" + kd("standalone__video_video_swin__vision_kernel")
    open(path, "w").write(txt)

if __name__ == "__main__":
    path = sys.argv[1] if len(sys.argv) > 1 else "standalone__video_video_swin__vision.s"
    for a in sys.argv[2:]:
        k, v = a.split("=")
        OPT[k] = type(OPT[k])(int(v)) if not isinstance(OPT[k], str) else v
    build(path)
```
